```python
import torch

def _softmax(x, axis=-1):
    return torch.softmax(x, dim=axis)
def _gelu(x):
    return torch.nn.functional.gelu(x, approximate="tanh")
def _silu(x):
    return torch.nn.functional.silu(x)
def _sigmoid(x):
    return torch.sigmoid(x)
def _layernorm(x, axis=-1, eps=1e-5):
    m = x.mean(dim=axis, keepdim=True)
    v = x.var(dim=axis, keepdim=True, unbiased=False)
    return (x - m) / torch.sqrt(v + eps)
def _scatter_add(tgt, idx, src, axis=0):
    return tgt.clone().index_add_(axis, idx, src)
def _segment_sum(src, seg, n):
    out = torch.zeros((n,) + src.shape[1:], dtype=src.dtype)
    return out.index_add_(0, seg, src)
def _pad(x, pw):
    flat = tuple(v for pair in reversed(pw) for v in pair)
    return torch.nn.functional.pad(x, flat)

kernel_name = 'sequential_preLN__softmax_full_mha__dense_activation_silu__prompt'

def setup_inputs():

    _w = (lambda a: (lambda t: t.to(torch.bfloat16) if t.is_floating_point() else t)(torch.as_tensor(a)))
    def _A_setup():
        B, S, D = 1, 2048, 640
        return {
            "x": _w((lambda *s: torch.randn(*s, dtype=torch.bfloat16) * 0.05)(B, S, D)),
            "wqkv": _w((lambda *s: torch.randn(*s, dtype=torch.bfloat16) * 0.05)(D, 3 * D)),
            "wo": _w((lambda *s: torch.randn(*s, dtype=torch.bfloat16) * 0.05)(D, D)),
        }
    _A_in = _A_setup()

    def _B_setup():
        B, S, D, F = 1, 2048, 640, 1536
        return {
            "x": _w((lambda *s: torch.randn(*s, dtype=torch.bfloat16) * 0.05)(B, S, D)),
            "w1": _w((lambda *s: torch.randn(*s, dtype=torch.bfloat16) * 3.2)(D, F) * (D ** -0.5)),
            "w2": _w((lambda *s: torch.randn(*s, dtype=torch.bfloat16) * 0.2)(F, D) * (F ** -0.5)),
        }
    _B_in = _B_setup()

    return {
        "A_x": _A_in["x"],
        "A_wqkv": _A_in["wqkv"],
        "A_wo": _A_in["wo"],
        "B_x": _B_in["x"],
        "B_w1": _B_in["w1"],
        "B_w2": _B_in["w2"],
    }

def reference(A_x, A_wqkv, A_wo, B_x, B_w1, B_w2):
    def _A_ref(x, wqkv, wo):
        B, S, D = x.shape
        H = 32; Dh = D // H
        qkv = (lambda x, *d: x.permute(*d))((x @ wqkv).reshape(B, S, 3, H, Dh), 2, 0, 3, 1, 4)
        q, k, v = qkv[0], qkv[1], qkv[2]
        scale = Dh ** -0.5
        scores = torch.einsum("bhqd,bhkd->bhqk", q, k) * scale
        p = _softmax(scores, axis=-1)
        o = torch.einsum("bhqk,bhkd->bhqd", p, v)
        return (lambda x, *d: x.permute(*d))(o, 0, 2, 1, 3).reshape(B, S, D) @ wo

    def _B_ref(x, w1, w2):
        h = torch.einsum("bsd,df->bsf", x, w1)
        h = _silu(h)
        out = torch.einsum("bsf,fd->bsd", h, w2)
        return out

    x = A_x
    h = x + _A_ref(_layernorm(x, axis=-1), A_wqkv, A_wo)
    h2 = h + _B_ref(_layernorm(h, axis=-1), B_w1, B_w2)
    return h2
```

```python
import sys
from hiprun import *
REPS = 6
def kernel(name, setup, body, nloads, lds_mode=False):
    return f"""
.text
.globl {name}
.p2align 8
.type {name},@function
{name}:
    s_load_dwordx4 s[4:7], s[0:1], 0
    v_mov_b32 v1, v0
    v_and_b32 v2, 63, v0            ; lane
    v_lshrrev_b32 v3, 6, v0         ; wave
    s_nop 0
    v_readfirstlane_b32 s20, v3
    s_waitcnt lgkmcnt(0)
    s_mov_b32 s8, s4
    s_mov_b32 s9, s5
    s_mov_b32 s10, 0x1000000
    s_mov_b32 s11, 0x00020000
{setup}
    s_mov_b32 s16, {REPS}
    s_mov_b32 s24, 0
L_{name}:
    s_barrier
    s_cmp_eq_u32 s16, {REPS-1}
    s_cbranch_scc0 L2_{name}
    s_memtime s[12:13]
    s_waitcnt lgkmcnt(0)
L2_{name}:
{body}
    s_waitcnt vmcnt(0)
    s_sub_u32 s16, s16, 1
    s_cmp_lg_u32 s16, 0
    s_cbranch_scc1 L_{name}
    s_barrier
    s_memtime s[14:15]
    s_waitcnt lgkmcnt(0)
    s_sub_u32 s14, s14, s12
    v_mov_b32 v2, s14
    s_lshl_b32 s3, s2, 12
    v_lshlrev_b32 v1, 2, v1
    v_add_u32 v1, s3, v1
    global_store_dword v1, v2, s[6:7]
    s_endpgm
.section .rodata,"a"
.p2align 6
.amdhsa_kernel {name}
  .amdhsa_next_free_vgpr 256
  .amdhsa_next_free_sgpr 64
  .amdhsa_accum_offset 256
  .amdhsa_group_segment_fixed_size 0
  .amdhsa_kernarg_size 16
  .amdhsa_user_sgpr_count 2
  .amdhsa_user_sgpr_kernarg_segment_ptr 1
  .amdhsa_system_sgpr_workgroup_id_x 1
.end_amdhsa_kernel
"""
tests = {}
NL = 40
base = """
    s_and_b32 s21, s2, 15
    s_mul_i32 s21, s21, 163840
"""
setup = base + """
    s_mul_i32 s22, s20, 40960
    s_add_u32 s21, s21, s22
    v_lshlrev_b32 v4, 4, v2
    v_add_u32 v4, s21, v4
"""
def loads(fn, n=NL): return "\n".join(fn(i) for i in range(n))
tests["lin_reg"] = (setup, loads(lambda i: f"    s_mov_b32 s23, {i*1024}\n    buffer_load_dwordx4 v[{8+4*(i%40)}:{11+4*(i%40)}], v4, s[8:11], s23 offen"), NL*4096)
setup = base + """
    s_mul_i32 s22, s20, 40960
    s_add_u32 s21, s21, s22
    v_and_b32 v4, 31, v2
    v_mul_u32_u24 v4, 1280, v4
    v_lshrrev_b32 v5, 5, v2
    v_lshl_add_u32 v4, v5, 4, v4
    v_add_u32 v4, s21, v4
"""
tests["r32x32_reg"] = (setup, loads(lambda i: f"    buffer_load_dwordx4 v[{8+4*(i%40)}:{11+4*(i%40)}], v4, s[8:11], 0 offen offset:{i*32}"), NL*4096)
setup = base + """
    s_mul_i32 s22, s20, 40960
    s_add_u32 s21, s21, s22
    v_and_b32 v4, 15, v2
    v_mul_u32_u24 v4, 1280, v4
    v_lshrrev_b32 v5, 4, v2
    v_lshl_add_u32 v4, v5, 4, v4
    v_add_u32 v4, s21, v4
    v_add_u32 v5, 20480, v4
"""
tests["r16x64_reg"] = (setup, loads(lambda i: f"    buffer_load_dwordx4 v[{8+4*(i%40)}:{11+4*(i%40)}], v{4+(i%2)}, s[8:11], 0 offen offset:{(i//2)*64}"), NL*4096)
setup = base + """
    s_mul_i32 s22, s20, 40960
    s_add_u32 s21, s21, s22
    v_lshlrev_b32 v4, 4, v2
    v_add_u32 v4, s21, v4
    s_mul_i32 s25, s20, 40960
"""
tests["lin_lds"] = (setup, loads(lambda i: f"    s_add_u32 m0, s25, {i*1024}\n    s_mov_b32 s23, {i*1024}\n    buffer_load_dwordx4 v4, s[8:11], s23 offen lds"), NL*4096)
setup = base + """
    s_mul_i32 s22, s20, 40960
    s_add_u32 s21, s21, s22
    v_lshrrev_b32 v4, 3, v2
    v_mul_u32_u24 v4, 1280, v4
    v_and_b32 v5, 7, v2
    v_lshl_add_u32 v4, v5, 4, v4
    v_add_u32 v4, s21, v4
    s_mul_i32 s25, s20, 40960
"""
tests["r8x128_lds"] = (setup, loads(lambda i: f"    s_add_u32 m0, s25, {i*1024}\n    s_mov_b32 s23, {(i%4)*8*1280 + (i//4)*128}\n    buffer_load_dwordx4 v4, s[8:11], s23 offen lds"), NL*4096)
setup = """
    s_and_b32 s21, s2, 15
    s_mul_i32 s21, s21, 240
    s_mul_i32 s22, s20, 160*3840
    s_add_u32 s21, s21, s22
    v_lshrrev_b32 v4, 4, v2
    v_mul_u32_u24 v4, 3840, v4
    v_and_b32 v5, 15, v2
    v_lshl_add_u32 v4, v5, 4, v4
    v_add_u32 v4, s21, v4
    s_mul_i32 s25, s20, 40960
"""
tests["w4x256_lds"] = (setup, loads(lambda i: f"    s_add_u32 m0, s25, {i*1024}\n    s_mov_b32 s23, {i*4*3840}\n    buffer_load_dwordx4 v4, s[8:11], s23 offen lds"), NL*4096)
setup = """
    s_and_b32 s21, s2, 15
    s_mul_i32 s21, s21, 240
    s_mul_i32 s22, s20, 160*3840
    s_add_u32 s21, s21, s22
    v_and_b32 v4, 7, v2
    v_lshrrev_b32 v4, 1, v4
    v_mul_u32_u24 v4, 3840, v4
    v_lshrrev_b32 v5, 3, v2
    v_lshl_add_u32 v4, v5, 5, v4
    v_and_b32 v5, 1, v2
    v_lshl_add_u32 v4, v5, 4, v4
    v_add_u32 v4, s21, v4
    s_mul_i32 s25, s20, 40960
"""
tests["wblk_lds"] = (setup, loads(lambda i: f"    s_add_u32 m0, s25, {i*1024}\n    s_mov_b32 s23, {i*4*3840}\n    buffer_load_dwordx4 v4, s[8:11], s23 offen lds"), NL*4096)
setup = """
    s_mul_i32 s21, s2, 163840
    s_mul_i32 s22, s20, 40960
    s_add_u32 s21, s21, s22
    v_lshlrev_b32 v4, 4, v2
    v_add_u32 v4, s21, v4
    s_mov_b32 s10, 0x4000000
"""
tests["lin_reg_mall"] = (setup, loads(lambda i: f"    s_mov_b32 s23, {i*1024}\n    buffer_load_dwordx4 v[{8+4*(i%40)}:{11+4*(i%40)}], v4, s[8:11], s23 offen"), NL*4096)
setup = base + """
    s_mul_i32 s22, s20, 40960
    s_add_u32 s21, s21, s22
    v_lshlrev_b32 v4, 4, v2
    v_add_u32 v4, s21, v4
"""
tests["lin_reg_sc1"] = (setup, loads(lambda i: f"    s_mov_b32 s23, {i*1024}\n    buffer_load_dwordx4 v[{8+4*(i%40)}:{11+4*(i%40)}], v4, s[8:11], s23 offen sc1"), NL*4096)
tests["lin_reg_sc01"] = (setup, loads(lambda i: f"    s_mov_b32 s23, {i*1024}\n    buffer_load_dwordx4 v[{8+4*(i%40)}:{11+4*(i%40)}], v4, s[8:11], s23 offen sc0 sc1"), NL*4096)
setup = base + """
    v_lshlrev_b32 v4, 4, v2
    v_add_u32 v4, s21, v4
"""
tests["same4_reg"] = (setup, loads(lambda i: f"    s_mov_b32 s23, {i*1024}\n    buffer_load_dwordx4 v[{8+4*(i%40)}:{11+4*(i%40)}], v4, s[8:11], s23 offen"), NL*4096)
if __name__ == "__main__":
    src = '.amdgcn_target "amdgcn-amd-amdhsa--gfx950"\n'
    ks = []
    for n, (st, b, nb) in tests.items():
        src += kernel("k_" + n, st, b, NL)
        ks.append(("k_" + n, 16, 64, 256, 256))
    src += metadata(ks)
    open("mb_mem.s", "w").write(src)
    co = assemble("mb_mem.s")
    if len(sys.argv) > 1 and sys.argv[1] == "build": sys.exit(0)
    m = Module(co)
    out = Buf(4096 * 512)
    srcb = Buf(64 << 20); srcb.memset(1)
    for n, (st, b, nb) in tests.items():
        r = []
        for grid in (1, 32, 256):
            out.memset(0)
            for _ in range(2):
                m.launch("k_" + n, (grid, 1, 1), (256, 1, 1), [srcb.ptr, out.ptr], lds=163840); sync()
            d = out.download(np.uint32, (512, 1024))[:grid, :256]
            cyc = np.median(d.max(axis=1)) / (REPS - 1)
            r.append(nb / cyc)
        print(f"{n:14s} B/clk/CU  g1: {r[0]:6.1f}  g32: {r[1]:6.1f} g256: {r[2]:6.1f}")
```

```python
import sys
from hiprun import *
from mb_mem import tests
NL=40
def kernel(name, setup, body):
    return f"""
.text
.globl {name}
.p2align 8
.type {name},@function
{name}:
    s_memtime s[12:13]
    s_load_dwordx4 s[4:7], s[0:1], 0
    v_mov_b32 v1, v0
    v_and_b32 v2, 63, v0            ; lane
    v_lshrrev_b32 v3, 6, v0         ; wave
    s_nop 0
    v_readfirstlane_b32 s20, v3
    s_waitcnt lgkmcnt(0)
    s_memtime s[26:27]
    s_mov_b32 s8, s4
    s_mov_b32 s9, s5
    s_mov_b32 s10, 0x1000000
    s_mov_b32 s11, 0x00020000
{setup}
{body}
    s_waitcnt vmcnt(39)
    s_memtime s[28:29]
    s_waitcnt vmcnt(0)
    s_memtime s[14:15]
    s_waitcnt lgkmcnt(0)
    s_sub_u32 s14, s14, s12
    s_sub_u32 s26, s26, s12
    s_sub_u32 s28, s28, s12
    v_mov_b32 v2, s14
    v_mov_b32 v3, s26
    v_mov_b32 v4, s28
    s_lshl_b32 s3, s2, 12
    v_lshlrev_b32 v1, 4, v1
    v_add_u32 v1, s3, v1
    global_store_dwordx4 v1, v[2:5], s[6:7]
    s_endpgm
.section .rodata,"a"
.p2align 6
.amdhsa_kernel {name}
  .amdhsa_next_free_vgpr 256
  .amdhsa_next_free_sgpr 64
  .amdhsa_accum_offset 256
  .amdhsa_group_segment_fixed_size 0
  .amdhsa_kernarg_size 16
  .amdhsa_user_sgpr_count 2
  .amdhsa_user_sgpr_kernarg_segment_ptr 1
  .amdhsa_system_sgpr_workgroup_id_x 1
.end_amdhsa_kernel
"""
if __name__ == "__main__":
    src = '.amdgcn_target "amdgcn-amd-amdhsa--gfx950"\n'
    ks = []
    names = ["lin_reg", "lin_lds", "lin_reg_mall"]
    for n in names:
        st, b, nb = tests[n]
        src += kernel("k_" + n, st, b)
        ks.append(("k_" + n, 16, 64, 256, 256))
    src += metadata(ks)
    open("mb_cold.s", "w").write(src)
    co = assemble("mb_cold.s")
    if len(sys.argv) > 1 and sys.argv[1] == "build": sys.exit(0)
    m = Module(co)
    out = Buf(4096 * 512)
    srcb = Buf(64 << 20); srcb.memset(1)
    big = Buf(512 << 20)
    for n in names:
        for mode in ("afterflush", "back2back", "back2back_nosync"):
            res = []
            for t in range(5):
                big.memset(t); sync()
                if mode != "afterflush":
                    m.launch("k_" + n, (256, 1, 1), (256, 1, 1), [srcb.ptr, out.ptr], lds=163840)
                    if mode == "back2back": sync()
                m.launch("k_" + n, (256, 1, 1), (256, 1, 1), [srcb.ptr, out.ptr], lds=163840); sync()
                d = out.download(np.uint32, (512, 256, 4))[:256]
                res.append((np.median(d[:, :, 1].max(axis=1)), np.median(d[:, :, 2].max(axis=1)), np.median(d[:, :, 0].max(axis=1)), d[:, :, 0].max()))
            r = np.median(np.array(res), axis=0)
            print(f"{n:14s} {mode:18s} kernarg {r[0]:7.0f}  first-load {r[1]:7.0f}  all(160KB/CU) {r[2]:7.0f}  worstCU {r[3]:7.0f} cycles")
```
